```python
import torch

def _softmax(x, axis=-1):
    return torch.softmax(x, dim=axis)
def _gelu(x):
    return torch.nn.functional.gelu(x, approximate="tanh")
def _silu(x):
    return torch.nn.functional.silu(x)
def _sigmoid(x):
    return torch.sigmoid(x)
def _layernorm(x, axis=-1, eps=1e-5):
    m = x.mean(dim=axis, keepdim=True)
    v = x.var(dim=axis, keepdim=True, unbiased=False)
    return (x - m) / torch.sqrt(v + eps)
def _scatter_add(tgt, idx, src, axis=0):
    return tgt.clone().index_add_(axis, idx, src)
def _segment_sum(src, seg, n):
    out = torch.zeros((n,) + src.shape[1:], dtype=src.dtype)
    return out.index_add_(0, seg, src)
def _pad(x, pw):
    flat = tuple(v for pair in reversed(pw) for v in pair)
    return torch.nn.functional.pad(x, flat)

kernel_name = 'parallel_sum__linear_attn_block__mixer_token_mlp__prompt'

def setup_inputs():

    _w = (lambda a: (lambda t: t.to(torch.bfloat16) if t.is_floating_point() else t)(torch.as_tensor(a)))
    def _A_setup():
        B, S, D = 1, 2048, 512
        return {
            "x": _w((lambda *s: torch.randn(*s, dtype=torch.bfloat16) * 0.05)(B, S, D)),
            "wqkv": _w((lambda *s: torch.randn(*s, dtype=torch.bfloat16) * 0.05)(D, 3 * D)),
            "wo": _w((lambda *s: torch.randn(*s, dtype=torch.bfloat16) * 0.05)(D, D)),
        }
    _A_in = _A_setup()

    def _B_setup():
        B, S, D, F = 1, 2048, 512, 1376
        return {
            "x": _w((lambda *s: torch.randn(*s, dtype=torch.bfloat16) * 0.05)(B, S, D)),
            "w1": _w((lambda *s: torch.randn(*s, dtype=torch.bfloat16) * 0.4)(S, F) * (S ** -0.5)),
            "b1": _w((lambda *s: torch.randn(*s, dtype=torch.bfloat16) * 3.2)(F) * 0.02),
            "w2": _w((lambda *s: torch.randn(*s, dtype=torch.bfloat16) * 0.2)(F, S) * (F ** -0.5)),
            "b2": _w((lambda *s: torch.randn(*s, dtype=torch.bfloat16) * 0.8)(S) * 0.02),
        }
    _B_in = _B_setup()

    return {
        "A_x": _A_in["x"],
        "A_wqkv": _A_in["wqkv"],
        "A_wo": _A_in["wo"],
        "B_x": _B_in["x"],
        "B_w1": _B_in["w1"],
        "B_b1": _B_in["b1"],
        "B_w2": _B_in["w2"],
        "B_b2": _B_in["b2"],
    }

def reference(A_x, A_wqkv, A_wo, B_x, B_w1, B_b1, B_w2, B_b2):
    def _A_ref(x, wqkv, wo):
        B, S, D = x.shape
        H = 32; Dh = D // H
        qkv = (lambda x, *d: x.permute(*d))((x @ wqkv).reshape(B, S, 3, H, Dh), 2, 0, 3, 1, 4)
        q, k, v = qkv[0], qkv[1], qkv[2]
        phi = lambda t: torch.where(t > 0, t + 1, torch.exp(t)) + 1e-6
        pq, pk = phi(q), phi(k)
        kv = torch.einsum("bhsd,bhse->bhde", pk, v)
        z = torch.einsum("bhsd->bhd", pk)
        num = torch.einsum("bhqd,bhde->bhqe", pq, kv)
        den = torch.einsum("bhqd,bhd->bhq", pq, z)[..., None] + 1e-6
        o = num / den
        return (lambda x, *d: x.permute(*d))(o, 0, 2, 1, 3).reshape(B, S, D) @ wo

    def _B_ref(x, w1, b1, w2, b2):
        B, S, D = x.shape
        h = _layernorm(x, axis=-1)
        u = torch.einsum("bsd,sf->bdf", h, w1) + b1
        u = _gelu(u)
        y = torch.einsum("bdf,fs->bds", u, w2) + b2
        return (lambda x, *d: x.permute(*d))(y, 0, 2, 1)

    x = A_x
    xn = _layernorm(x, axis=-1)
    return x + _A_ref(xn, A_wqkv, A_wo) + _B_ref(xn, B_w1, B_b1, B_w2, B_b2)
```

```python
class Asm:
    def __init__(self):
        self.L = []
    def __call__(self, s):
        for line in s.split('\n'):
            self.L.append(line)
    def text(self):
        return '\n'.join(self.L) + '\n'
    def header(self, launches):
        for l in launches:
            self(l)
        self('.amdgcn_target "amdgcn-amd-amdhsa--gfx950"')
        self('.text')
    def begin(self, name):
        self(f'.globl {name}'); self('.p2align 8'); self(f'.type {name},@function'); self(f'{name}:')
    def desc(self, name, vgpr=256, agpr=0, sgpr=102, kernarg=88):
        acc = (vgpr + 3) // 4 * 4
        nf = acc + agpr if agpr else vgpr
        self('.section .rodata,"a"'); self('.p2align 6'); self(f'.amdhsa_kernel {name}')
        self(f'  .amdhsa_next_free_vgpr {nf}'); self(f'  .amdhsa_next_free_sgpr {sgpr}')
        self(f'  .amdhsa_accum_offset {acc}'); self('  .amdhsa_group_segment_fixed_size 0')
        self(f'  .amdhsa_kernarg_size {kernarg}'); self('  .amdhsa_user_sgpr_count 2')
        self('  .amdhsa_user_sgpr_kernarg_segment_ptr 1'); self('  .amdhsa_system_sgpr_workgroup_id_x 1')
        self('  .amdhsa_float_denorm_mode_32 3')
        self('.end_amdhsa_kernel'); self('.text')
    def srd(self, d, lo, nbytes):
        self(f's_mov_b32 s{d}, s{lo}'); self(f's_and_b32 s{d+1}, s{lo+1}, 0xffff')
        self(f's_mov_b32 s{d+2}, {nbytes}'); self(f's_mov_b32 s{d+3}, 0x20000')
```

```python
import re
def regs(tok):
    tok = tok.strip().lstrip('-')
    tok = re.sub(r'^abs\((.*)\)$', r'\1', tok); tok = tok.strip('|')
    m = re.fullmatch(r'([vas])\[(\d+):(\d+)\]', tok)
    if m: return {(m.group(1), i) for i in range(int(m.group(2)), int(m.group(3))+1)}
    m = re.fullmatch(r'([vas])(\d+)', tok)
    if m: return {(m.group(1), int(m.group(2)))}
    if tok == 'vcc': return {('s', 'vcc')}
    if tok == 'm0': return {('s', 'm0')}
    if tok == 'exec': return {('s', 'exec')}
    return set()
TRANS = ('v_exp_f32', 'v_log_f32', 'v_rcp_f32', 'v_rsq_f32', 'v_sqrt_f32', 'v_sin_f32', 'v_cos_f32')
def parse(line):
    line = line.split(';')[0].strip()
    if not line or line.endswith(':') or line.startswith('.'): return None
    op, _, rest = line.partition(' ')
    ops = [t.strip() for t in re.split(r',(?![^\[]*\])', rest)] if rest else []
    if ops:
        last = ops[-1].split(' ')
        ops[-1] = last[0]; mods = ' '.join(last[1:])
    else: mods = ''
    d = dict(op=op, ops=ops, mods=mods, text=line, w=set(), r=set(), kind='other', states=1)
    R = [regs(t) for t in ops]
    if op == 's_nop': d['states'] = int(ops[0]) + 1
    if op.startswith('v_mfma'):
        d['kind'] = 'mfma'; d['w'] = R[0]; d['ab'] = R[1] | R[2]; d['c'] = R[3]; d['r'] = d['ab'] | d['c']
        d['pass'] = 8 if '32x32' in op else 4
    elif op.startswith('v_'):
        d['kind'] = 'valu'
        nd = 1
        if op.startswith(('v_add_co', 'v_sub_co', 'v_addc_co')): nd = 2
        for x in R[:nd]: d['w'] |= x
        for x in R[nd:]: d['r'] |= x
        if op.startswith(('v_fmac', 'v_dot2c', 'v_writelane')) : d['r'] |= R[0]
        if op.startswith('v_permlane'): d['r'] |= R[0]; d['w'] |= R[1]
        if '_dpp' in op or 'row_' in mods: d['dpp'] = True; d['r'] |= R[0]
        if op.startswith('v_cndmask') and len(ops) == 3: d['r'] |= {('s', 'vcc')}
    elif op.startswith('ds_'):
        d['kind'] = 'ds'
        if op.startswith('ds_read'): d['w'] = R[0]; d['r'] = R[1]
        else:
            for x in R: d['r'] |= x
    elif op.startswith('buffer_'):
        d['kind'] = 'vmem'
        if op in ('buffer_inv', 'buffer_wbl2'): return d
        lds = 'lds' in mods.split()
        if lds:
            for x in R: d['r'] |= x
            d['r'] |= {('s', 'm0')}; d['ldsdma'] = True
        elif op.startswith('buffer_load'):
            d['w'] = R[0]
            for x in R[1:]: d['r'] |= x
        else:
            for x in R: d['r'] |= x
            if op.endswith(('x3', 'x4')): d['widestore'] = R[0]
    elif op.startswith('s_'):
        d['kind'] = 'salu'
        if op.startswith(('s_cmp', 's_bitcmp', 's_waitcnt', 's_barrier', 's_branch', 's_cbranch', 's_sleep', 's_endpgm', 's_setprio', 's_nop')):
            for x in R: d['r'] |= x
        else:
            if R: d['w'] = R[0]
            for x in R[1:]: d['r'] |= x
            if 'saveexec' in op: d['w'] |= {('s', 'exec')}
    return d
def check(text, verbose=True):
    ins = [(n, parse(l)) for n, l in enumerate(text.split('\n'), 1)]
    ins = [(n, d) for n, d in ins if d]
    errs = []
    for i, (n, c) in enumerate(ins):
        dist = 0
        for j in range(i-1, max(-1, i-24), -1):
            p = ins[j][1]
            if p['op'] in ('s_endpgm', 's_branch'): break
            need = 0; why = ''
            vw = {x for x in p['w'] if x[0] in 'va'}; sw = {x for x in p['w'] if x[0] == 's'}
            if p['kind'] == 'valu':
                isdot = p['op'].startswith('v_dot')
                if c['kind'] == 'mfma' and vw & c['r']: need, why = (3 if isdot else 2), 'valu->mfma'
                if c['kind'] == 'valu':
                    if p['op'].startswith(TRANS) and vw & c['r'] and not c['op'].startswith(TRANS): need, why = max(need, 1), 'trans->valu'
                    if (c['op'].startswith('v_permlane') or c.get('dpp')) and vw & c['r']: need, why = max(need, 2), 'valu->dpp/permlane'
                    if c['op'].startswith(('v_readlane', 'v_readfirstlane')) and vw & c['r']: need, why = max(need, 1), 'valu->readlane'
                    if sw & c['r']: need, why = max(need, 2), 'valu sgpr->valu'
                    if isdot and (vw & (c['r'] | c['w'])) and c['op'] != p['op']: need, why = max(need, 3), 'dot->other'
                if isdot and c['kind'] in ('ds', 'vmem') and vw & c['r']: need, why = max(need, 3), 'dot->mem'
                if c['kind'] == 'vmem' and sw & c['r']: need, why = max(need, 5), 'valu sgpr->vmem'
            if p['kind'] == 'mfma':
                big = 12 if p['pass'] == 8 else 8
                if c['kind'] == 'mfma':
                    if vw & c['ab']: need, why = big, 'mfma D->AB'
                    elif vw & c['c'] and not (p['w'] == c['c'] and p['pass'] == c['pass']): need, why = big-2, 'mfma D->C overlap'
                    elif vw & c['w'] and not (vw & c['c']): need, why = big, 'mfma D->D waw'
                elif c['kind'] in ('valu', 'ds', 'vmem'):
                    if vw & (c['r'] | c['w']): need, why = big, 'mfma D->' + c['kind']
                    elif c['kind'] == 'valu' and p['c'] & c['w']: need, why = (7 if p['pass'] == 8 else 3), 'mfma C war'
            if p.get('widestore') and c['kind'] in ('valu', 'mfma') and p['widestore'] & c['w']: need, why = max(need, 2), 'store war'
            if p.get('widestore') and c['kind'] in ('ds', 'vmem') and p['widestore'] & c['w']: need, why = max(need, 1), 'store war'
            if p['kind'] == 'salu' and ('s', 'm0') in sw and c.get('ldsdma'): need, why = max(need, 1), 'm0->dma'
            if need > dist:
                errs.append(f'line {n}: {why} needs {need} has {dist}: [{p["text"]}] -> [{c["text"]}]')
            dist += p['states']
    if verbose:
        for e in errs[:40]: print('HAZARD', e)
    return errs
```

```python
import sys
from asmlib import Asm
NAME = 'parallel_sum__linear_attn_block__mixer_token_mlp__prompt'
H_OFF   = 0
O_OFF   = 2 << 20
G_OFF   = 4 << 20
KV_OFF  = 6 << 20
Z_OFF   = KV_OFF + (512 << 10)
ST_OFF  = Z_OFF + (64 << 10)
CS_OFF  = ST_OFF + (16 << 10)
FL_OFF  = CS_OFF + (8 << 10)
FL_LN, FL_KV, FL_G, FL_O, FL_CS = [FL_OFF + i*16384 for i in range(5)]
FL_RD   = FL_OFF + 5*16384
EP_OFF  = FL_RD + 4096
TS_OFF  = EP_OFF + 4096
WS_USED = 7 << 20
assert TS_OFF + 256*64*4 <= WS_USED
X, WQ, WO, W1, B1, W2, B2, OUT, WS = 28, 32, 36, 40, 44, 48, 52, 56, 64
def srd(r): return f's[{r}:{r+3}]'
S_WAVE, S_TAG = 26, 27
S_XCD, S_IDX, S_A, S_B, S_ST, S_NT, S_ROT, S_REP = 4, 5, 6, 7, 8, 9, 10, 11
LANE = 2
LDS_TOTAL = 163840
LDS_LN = 122880
LDS_SUM = 139264
LDS_ST = 139776
LDS_KVX = 143872
LOG2E = 0x3fb8aa3b
POLL_MAX = 1 << 18

class Q:
    def __init__(self, a, name, mx): self.a, self.name, self.mx, self.q = a, name, mx, []
    def issue(self, tag):
        self.q.append(tag); assert len(self.q) <= self.mx, (self.name, len(self.q))
    def need(self, *tags):
        idx = [i for i, t in enumerate(self.q) if t in tags]
        if not idx: return None
        n = len(self.q) - 1 - idx[-1]
        self.q = self.q[idx[-1]+1:]
        return n
    def wait(self, *tags):
        n = self.need(*tags)
        if n is not None: self.a(f's_waitcnt {self.name}({n})')
    def drain(self):
        self.q = []; self.a(f's_waitcnt {self.name}(0)')

class K(Asm):
    def __init__(self, ts=False, stop=None):
        super().__init__(); self.n = 0; self.ts = ts; self.stop = stop
        self.vm = Q(self, 'vmcnt', 63); self.lg = Q(self, 'lgkmcnt', 15)
    def lab(self, s): self.n += 1; return f'L_{s}_{self.n}'
    def stamp(self, i):
        if not self.ts: return
        self('s_memrealtime s[100:101]'); self('s_waitcnt lgkmcnt(0)'); self.lg.q = []
        self(f'v_writelane_b32 v255, s100, {i}')
    def stamp_flush(self):
        if not self.ts: return
        self(f's_lshl_b32 s68, s2, 2'); self(f's_add_u32 s68, s68, s{S_WAVE}'); self('s_lshl_b32 s68, s68, 6'); self(f's_add_u32 s68, s68, {TS_OFF}')
        self(f'v_lshlrev_b32 v254, 2, v{LANE}'); self(f'v_cmp_gt_u32 vcc, 16, v{LANE}'); self('s_and_saveexec_b64 s[70:71], vcc')
        self(f'buffer_store_dword v255, v254, {srd(WS)}, s68 offen'); self('s_mov_b64 exec, s[70:71]')

def publish(a, base, s_idx, nrep=8):
    l = a.lab('pub')
    a(f's_cmp_lg_u32 s{S_WAVE}, 0'); a(f's_cbranch_scc1 {l}')
    a(f's_lshl_b32 s68, {s_idx}, 4'); a(f's_add_u32 s68, s68, {base}')
    a(f'v_lshlrev_b32 v3, 11, v{LANE}'); a(f'v_mov_b32 v4, s{S_TAG}')
    a(f's_mov_b64 exec, {(1 << nrep) - 1}')
    a(f'buffer_store_dword v4, v3, {srd(WS)}, s68 offen sc1')
    a('s_mov_b64 exec, -1')
    a(f'{l}:')

def poll(a, base, s_first, n, rep=True, vt=3):
    l = a.lab('poll'); d = a.lab('polld')
    a(f's_lshl_b32 s68, {s_first}, 4'); a(f's_add_u32 s68, s68, {base}')
    if rep: a(f's_add_u32 s68, s68, s{S_REP}')
    a(f'v_min_u32 v{vt}, {n-1}, v{LANE}'); a(f'v_lshlrev_b32 v{vt}, 4, v{vt}')
    a('s_mov_b32 s69, 0')
    a(f'{l}:')
    a(f'buffer_load_dword v{vt+1}, v{vt}, {srd(WS)}, s68 offen sc1')
    a('s_waitcnt vmcnt(0)'); a.vm.q = []
    a(f'v_cmp_ne_u32 vcc, s{S_TAG}, v{vt+1}')
    a(f's_cbranch_vccz {d}')
    a('s_add_u32 s69, s69, 1'); a(f's_cmp_lt_u32 s69, {POLL_MAX}'); a(f's_cbranch_scc0 {d}')
    a('s_sleep 1'); a(f's_branch {l}')
    a(f'{d}:')

def prologue(a):
    a('s_cmp_ge_u32 s2, 256'); a('s_cbranch_scc1 L_exit')
    a('s_load_dwordx16 s[4:19], s[0:1], 0')
    a('s_load_dwordx2 s[20:21], s[0:1], 64')
    a('s_load_dwordx2 s[24:25], s[0:1], 80')
    if a.ts: a('s_memrealtime s[98:99]')
    a('v_lshrrev_b32 v1, 6, v0')
    a(f'v_and_b32 v{LANE}, 63, v0')
    a(f'v_readfirstlane_b32 s{S_WAVE}, v1')
    a('s_getpc_b64 s[68:69]')
    a('L_pc:')
    a('s_lshr_b32 s70, s2, 3')
    a('s_mul_i32 s70, s70, CODE_SHARE')
    a('v_add_u32 v3, s70, v0'); a('v_lshlrev_b32 v3, 7, v3')
    a('v_cmp_gt_u32 vcc, CODE_SHARE, v0'); a('s_movk_i32 s71, 0'); a('s_mov_b32 s71, L_end-L_pc-4')
    a('v_cmp_gt_u32 s[72:73], s71, v3'); a('s_and_b64 vcc, vcc, s[72:73]')
    a('v_mov_b32 v5, s69'); a('v_add_co_u32 v4, s[72:73], s68, v3'); a('s_nop 1'); a('v_addc_co_u32 v5, s[72:73], 0, v5, s[72:73]')
    a('s_and_saveexec_b64 s[72:73], vcc'); a('s_cbranch_execz L_nopf')
    a('global_load_dword v253, v[4:5], off')
    a('L_nopf:'); a('s_mov_b64 exec, s[72:73]')
    a('s_waitcnt lgkmcnt(0)')
    a(f's_add_u32 s22, s24, {EP_OFF}'); a('s_addc_u32 s23, s25, 0')
    a(f's_load_dword s{S_TAG}, s[22:23], 0')
    a.srd(X, 4, 2048*512*2); a.srd(WQ, 6, 512*1536*2); a.srd(W1, 12, 2048*1376*2); a.srd(WS, 24, WS_USED)
    a.srd(WO, 8, 512*512*2); a.srd(B1, 14, 1376*2); a.srd(W2, 16, 1376*2048*2); a.srd(B2, 18, 2048*2); a.srd(OUT, 20, 2048*512*2)
    if a.ts: a('v_mov_b32 v255, 0'); a('v_writelane_b32 v255, s98, 0')
    a(f's_and_b32 s{S_XCD}, s2, 7'); a(f's_lshr_b32 s{S_IDX}, s2, 3'); a(f's_lshl_b32 s{S_REP}, s{S_XCD}, 11')
    a(f's_and_b32 s68, s{S_IDX}, 3'); a(f's_lshl_b32 s{S_ST}, s{S_XCD}, 2'); a(f's_add_u32 s{S_ST}, s{S_ST}, s68'); a(f's_lshr_b32 s{S_NT}, s{S_IDX}, 2')
    a(f's_cmp_lt_u32 s{S_IDX}, 16'); a('s_cbranch_scc0 L_g2')

def make_tag(a):
    a('s_waitcnt lgkmcnt(0)'); a.lg.q = []
    a(f's_mul_i32 s{S_TAG}, s{S_TAG}, 0x9E3779B1'); a(f's_add_u32 s{S_TAG}, s{S_TAG}, 0x7F4A7C15')

def ln_issue(a):
    a('v_lshlrev_b32 v3, 2, v0')
    a(f's_lshl_b32 s12, s{S_A}, 3'); a(f's_add_u32 s12, s12, s{S_B}')
    a('s_lshl_b32 s68, s12, 14')
    for i in range(1, 4): a(f's_add_u32 s{68+i}, s68, {4096*i}')
    a(f'v_and_b32 v4, 15, v0'); a('v_lshlrev_b32 v4, 10, v4')
    a(f'buffer_load_ushort v9, v4, {srd(X)}, s68 offen'); a.vm.issue('piv')
    for r in range(16):
        a(f'buffer_load_dword v{10+r}, v3, {srd(X)}, s{68 + r//4} offen offset:{(r%4)*1024}'); a.vm.issue('x')

def ln_compute(a):
    D = 64; V = 10
    a.vm.wait('piv')
    a('v_lshlrev_b32 v9, 16, v9')
    a(f'v_lshrrev_b32 v5, 4, v{LANE}'); a('v_lshlrev_b32 v5, 7, v5')
    for r in range(16): a(f'v_readlane_b32 s{72+r}, v9, {r}')
    a(f'v_lshl_add_u32 v5, s{S_WAVE}, 2, v5')
    a(f'v_add_u32 v5, {LDS_SUM}, v5')
    a.vm.wait('x')
    for r in range(16):
        a(f'v_lshlrev_b32 v{D+2*r}, 16, v{10+r}')
        a(f'v_and_b32 v{D+2*r+1}, 0xffff0000, v{10+r}')
    for r in range(16):
        p = 72 + (r & ~1); hi = r & 1
        a(f'v_pk_add_f32 v[{D+2*r}:{D+2*r+1}], v[{D+2*r}:{D+2*r+1}], s[{p}:{p+1}] op_sel:[0,{hi}] op_sel_hi:[1,{hi}] neg_lo:[0,1] neg_hi:[0,1]')
    for r in range(16):
        a(f'v_add_f32 v{V+r}, v{D+2*r}, v{D+2*r+1}')
        a(f'v_mul_f32 v{V+16+r}, v{D+2*r}, v{D+2*r}')
    for r in range(16):
        a(f'v_fmac_f32 v{V+16+r}, v{D+2*r+1}, v{D+2*r+1}')
    for i in range(16): a(f'v_permlane32_swap_b32 v{V+i}, v{V+16+i}')
    for i in range(16): a(f'v_add_f32 v{V+i}, v{V+i}, v{V+16+i}')
    for i in range(8): a(f'v_permlane16_swap_b32 v{V+i}, v{V+8+i}')
    for i in range(8): a(f'v_add_f32 v{V+i}, v{V+i}, v{V+8+i}')
    for sh in (8, 4, 2, 1):
        for i in range(8):
            a(f'v_add_f32_dpp v{V+i}, v{V+i}, v{V+i} row_ror:{sh} row_mask:0xf bank_mask:0xf')
    a('s_mov_b32 exec_lo, 0x00010001'); a('s_mov_b32 exec_hi, 0x00010001')
    for i in range(8): a(f'ds_write_b32 v5, v{V+i} offset:{16*i}')
    a('s_mov_b64 exec, -1')
    a(f'v_and_b32 v6, 15, v{LANE}'); a('v_lshlrev_b32 v6, 4, v6')
    a('s_waitcnt lgkmcnt(0)'); a('s_barrier')
    a(f'v_add_u32 v6, {LDS_SUM}, v6')
    a(f'ds_read_b128 v[12:15], v6'); a(f'ds_read_b128 v[16:19], v6 offset:256')
    a('s_mov_b32 s70, 0x3727c5ac')
    a('s_waitcnt lgkmcnt(0)')
    a('v_pk_add_f32 v[12:13], v[12:13], v[14:15]'); a('v_pk_add_f32 v[16:17], v[16:17], v[18:19]')
    a('v_add_f32 v12, v12, v13'); a('v_add_f32 v16, v16, v17')
    a('v_mul_f32 v12, 0x3b000000, v12')
    a('v_mul_f32 v16, 0x3b000000, v16')
    a('v_fma_f32 v16, -v12, v12, v16')
    a('v_max_f32 v16, 0, v16')
    a('v_add_f32 v13, s70, v16'); a('v_rsq_f32 v13, v13')
    a('v_add_f32 v9, v9, v12')
    a('v_mul_f32 v14, v16, v13'); a('v_fma_f32 v14, v14, v13, s70'); a('v_rsq_f32 v14, v14')
    a('v_mul_f32 v9, v9, v13')
    a('v_mul_f32 v14, v14, v13')
    a('v_mul_f32 v15, v12, v14'); a('v_sub_f32 v15, 0, v15')
    a(f'v_and_b32 v6, 16, v{LANE}'); a('v_cmp_eq_u32 vcc, 0, v6')
    a(f'v_lshlrev_b32 v6, 5, v{LANE}'); a(f'v_mov_b32 v7, {LDS_LN}'); a(f'v_lshl_add_u32 v7, s{S_WAVE}, 11, v7')
    a('v_cndmask_b32 v9, v9, v13, vcc')
    a('v_add_u32 v6, v6, v7'); a(f'v_lshl_add_u32 v7, v{LANE}, 4, v7')
    a(f'v_lshlrev_b32 v5, 4, v{LANE}'); a(f'v_lshl_add_u32 v5, s{S_WAVE}, 11, v5')
    a('s_lshl_b32 s68, s12, 14'); a('s_add_u32 s69, s68, 8192')
    for g in range(2):
        for r in range(8):
            a(f'v_readlane_b32 s{72+2*r}, v14, {8*g+r}'); a(f'v_readlane_b32 s{73+2*r}, v15, {8*g+r}')
        a('s_nop 0')
        DD = D + 16*g
        for r in range(8):
            p = 72 + 2*r
            a(f'v_pk_fma_f32 v[{DD+2*r}:{DD+2*r+1}], v[{DD+2*r}:{DD+2*r+1}], s[{p}:{p+1}], s[{p}:{p+1}] op_sel:[0,0,1] op_sel_hi:[1,0,1]')
        C = 20 + 8*g
        for j in range(4):
            a(f'v_cvt_pk_bf16_f32 v{C+j}, v{DD+4*j}, v{DD+4*j+2}')
            a(f'v_cvt_pk_bf16_f32 v{C+4+j}, v{DD+4*j+1}, v{DD+4*j+3}')
        a(f'ds_write_b128 v6, v[{C}:{C+3}] offset:{8192*g}'); a(f'ds_write_b128 v6, v[{C+4}:{C+7}] offset:{8192*g+16}')
        a('s_waitcnt lgkmcnt(0)')
        R = 36 + 8*g
        a(f'ds_read_b128 v[{R}:{R+3}], v7 offset:{8192*g}'); a(f'ds_read_b128 v[{R+4}:{R+7}], v7 offset:{8192*g+1024}')
        if g == 0:
            l = a.lab('nost')
            a(f'v_and_b32 v4, 7, v{LANE}'); a(f'v_bfe_u32 v8, v{LANE}, 3, 1'); a('v_lshlrev_b32 v4, 2, v4'); a('v_lshl_add_u32 v4, v8, 6, v4')
            a(f'v_bfe_u32 v8, v{LANE}, 4, 1'); a('v_lshl_add_u32 v4, v8, 5, v4')
            a('s_lshl_b32 s70, s12, 7'); a(f's_add_u32 s70, s70, {ST_OFF}')
            a(f's_cmp_lg_u32 s{S_WAVE}, 0'); a(f's_cbranch_scc1 {l}')
            a('s_mov_b32 exec_hi, 0')
            a(f'buffer_store_dword v9, v4, {srd(WS)}, s70 offen sc1')
            a('s_mov_b64 exec, -1')
            a(f'{l}:')
        a('s_waitcnt lgkmcnt(0)')
        a(f'buffer_store_dwordx4 v[{R}:{R+3}], v5, {srd(WS)}, s{68+g} offen sc1')
        a(f'buffer_store_dwordx4 v[{R+4}:{R+7}], v5, {srd(WS)}, s{68+g} offen offset:1024 sc1')
    a.vm.drain()
    a('s_barrier')
    publish(a, FL_LN, 's12')

def mfma(a, d, A, B, first=False):
    c = '0' if first else f'v[{d}:{d+15}]'
    a(f'v_mfma_f32_32x32x16_bf16 v[{d}:{d+15}], {A}, {B}, {c}')
def ar(n, w=4): return f'a[{n}:{n+w-1}]'
def vr(n, w=4): return f'v[{n}:{n+w-1}]'

def interleave(a, mf, fill):
    n = len(mf); per = [[] for _ in range(n)]
    for i, f in enumerate(fill): per[i * n // max(len(fill), 1)].append(f)
    for i in range(n):
        mf[i]()
        for f in per[i]: f()

def phi_pairs(a, pairs, zacc=None):
    T = 10
    for i0 in range(0, len(pairs), 4):
        grp = pairs[i0:i0+4]
        for j, (acc, mkc, fma, dst) in enumerate(grp): mkc(T + 2*j)
        for j, (acc, mkc, fma, dst) in enumerate(grp): fma(T + 2*j)
        for j in range(len(grp)):
            a(f'v_pk_fma_f32 {vr(T+8+2*j,2)}, {vr(T+2*j,2)}, s[80:81], s[80:81] op_sel:[0,0,1] op_sel_hi:[1,0,1]')
        for j in range(len(grp)):
            a(f'v_exp_f32 v{T+8+2*j}, v{T+8+2*j} clamp'); a(f'v_max_f32 v{T+2*j}, s82, v{T+2*j}')
            a(f'v_exp_f32 v{T+9+2*j}, v{T+9+2*j} clamp'); a(f'v_max_f32 v{T+1+2*j}, s82, v{T+1+2*j}')
        for j in range(len(grp)):
            a(f'v_pk_add_f32 {vr(T+2*j,2)}, {vr(T+2*j,2)}, {vr(T+8+2*j,2)}')
        for j, (acc, mkc, fma, dst) in enumerate(grp):
            a(f'v_cvt_pk_bf16_f32 v{dst}, v{T+2*j}, v{T+1+2*j}')
            if zacc is not None:
                if i0 == 0 and j < 2: a(f'v_mov_b64 {vr(zacc+2*j,2)}, {vr(T+2*j,2)}')
                else: a(f'v_pk_add_f32 {vr(zacc+2*(j&1),2)}, {vr(zacc+2*(j&1),2)}, {vr(T+2*j,2)}')

def g1(a):
    VA, VB, VAR, VBR = 240, 244, 246, 250
    SA, SB = 13, 14
    AQ, AK, AV = 64, 96, 128
    a(f's_and_b32 s68, s{S_XCD}, 3'); a('s_lshl_b32 s68, s68, 2'); a(f's_and_b32 s69, s{S_IDX}, 3'); a(f's_add_u32 s{S_A}, s68, s69')
    a(f's_lshr_b32 s68, s{S_XCD}, 2'); a('s_lshl_b32 s68, s68, 2'); a(f's_lshr_b32 s69, s{S_IDX}, 2'); a(f's_add_u32 s{S_B}, s68, s69')
    ln_issue(a)
    a(f's_add_u32 s{S_ROT}, s{S_A}, s{S_B}'); a(f's_and_b32 s{S_ROT}, s{S_ROT}, 3')
    a(f's_lshl_b32 s{SA}, s{S_ROT}, 8'); a(f's_mul_i32 s{SB}, s{S_ROT}, {2*64*3072}')
    a(f'v_lshrrev_b32 v3, 3, v{LANE}'); a(f'v_and_b32 v4, 7, v{LANE}'); a(f'v_lshrrev_b32 v5, 4, v{LANE}')
    a(f's_lshl_b32 s68, s{S_A}, 7'); a(f's_lshl_b32 s69, s{S_WAVE}, 5'); a('s_add_u32 s68, s68, s69'); a('s_lshl_b32 s68, s68, 10')
    a('v_lshl_add_u32 v6, v3, 10, s68')
    for m in range(4):
        a(f'v_add_u32 v7, {4*(m&1)}, v5'); a('v_xor_b32 v7, v4, v7'); a('v_and_b32 v7, 7, v7')
        a(f'v_lshl_add_u32 v{VA+m}, v7, 4, v6')
        if m: a(f'v_add_u32 v{VA+m}, {m*7168}, v{VA+m}')
    a('v_and_b32 v7, 1, v5'); a('v_lshlrev_b32 v7, 2, v7'); a('v_xor_b32 v7, v4, v7')
    a(f's_mul_i32 s68, s{S_WAVE}, {16*3072}'); a(f's_lshl_b32 s69, s{S_B}, 7'); a('s_add_u32 s68, s68, s69')
    a('v_mul_u32_u24 v6, 3072, v3'); a('v_add_u32 v6, s68, v6'); a(f'v_lshl_add_u32 v{VB}, v7, 4, v6')
    a(f'v_add_u32 v{VB+1}, {8*3072-1024}, v{VB}')
    a(f's_lshl_b32 s15, s{S_WAVE}, 12'); a(f's_lshl_b32 s16, s{S_WAVE}, 11'); a('s_add_u32 s16, s16, 49152')
    def dma_ops(s):
        slot = s % 3; ops = []
        for m in range(4):
            def f(m=m):
                if m == 0: a(f's_add_u32 m0, s15, {slot*16384}'); a('s_nop 0')
                a(f'buffer_load_dwordx4 v{VA+m}, {srd(X)}, s{SA} offen offset:{m*1024} lds'); a.vm.issue(('st', s))
            ops.append(f)
        for seg in range(3):
            for m in range(2):
                def f(seg=seg, m=m):
                    if m == 0:
                        a(f's_add_u32 m0, s16, {slot*24576 + seg*8192}'); a(f's_add_u32 s17, s{SB}, {seg*1024}')
                    a(f'buffer_load_dwordx4 v{VB+m}, {srd(WQ)}, s17 offen offset:{m*1024} lds'); a.vm.issue(('st', s))
                    if seg == 2 and m == 1:
                        a(f's_add_u32 s{SA}, s{SA}, 128'); a(f's_add_u32 s{SB}, s{SB}, {64*3072}')
                        if (s + 1) % 2 == 0 and s + 1 < 8:
                            a(f's_cmp_eq_u32 s{S_ROT}, {(8 - (s+1))//2}'); a(f's_cselect_b32 s{SA}, 0, s{SA}'); a(f's_cselect_b32 s{SB}, 0, s{SB}')
                ops.append(f)
        return ops
    for f in dma_ops(0): f()
    make_tag(a)
    a.stamp(1)
    ln_compute(a)
    a.stamp(2)
    for s in (1, 2):
        for f in dma_ops(s): f()
    a(f'v_and_b32 v3, 31, v{LANE}'); a(f'v_lshrrev_b32 v4, 5, v{LANE}'); a(f'v_bfe_u32 v5, v{LANE}, 1, 3'); a('v_xor_b32 v5, v5, v4')
    a(f's_lshr_b32 s68, s{S_WAVE}, 1'); a('s_lshl_b32 s68, s68, 13'); a('v_lshl_add_u32 v3, v3, 7, s68')
    for ks in range(4):
        a(f'v_xor_b32 v6, {2*ks}, v5'); a(f'v_lshl_add_u32 v{VAR+ks}, v6, 4, v3')
    a(f'v_bfe_u32 v3, v{LANE}, 2, 2'); a('v_lshl_add_u32 v3, v4, 3, v3'); a('v_lshlrev_b32 v3, 7, v3')
    a(f'v_bfe_u32 v5, v{LANE}, 4, 1'); a(f'v_bfe_u32 v6, v{LANE}, 1, 1'); a('v_lshl_add_u32 v5, v5, 1, v6')
    a(f's_and_b32 s68, s{S_WAVE}, 1'); a(f'v_bfe_u32 v6, v{LANE}, 3, 1'); a('v_xor_b32 v6, s68, v6'); a('v_lshl_add_u32 v5, v6, 2, v5')
    a('v_lshl_add_u32 v3, v5, 4, v3'); a(f'v_and_b32 v5, 1, v{LANE}'); a('v_lshl_add_u32 v3, v5, 3, v3')
    a(f'v_add_u32 v{VBR}, 49152, v3'); a(f'v_add_u32 v{VBR+1}, {49152+49152}, v3')
    def reads(s, ks):
        slot = s % 3; p = (4*s + ks) & 1; XF = 8*p; WF = 16 + 12*p; t = (s, ks); ops = []
        def rx(b):
            a(f'ds_read_b128 {ar(XF+4*b)}, v{VAR+ks} offset:{slot*16384 + b*4096}'); a.lg.issue((t, 'x', b))
        def rw(seg, jj):
            base = VBR + (1 if slot == 2 else 0); off = (0 if slot == 2 else slot*24576) + seg*8192 + ks*2048 + jj*512
            a(f'ds_read_b64_tr_b16 {ar(WF+4*seg+2*jj, 2)}, v{base} offset:{off}'); a.lg.issue((t, 'w', seg))
        return [lambda: rx(0), lambda: rw(0, 0), lambda: rw(0, 1), lambda: rx(1), lambda: rw(1, 0), lambda: rw(1, 1), lambda: rw(2, 0), lambda: rw(2, 1)]
    a.vm.wait(('st', 0)); a('s_barrier')
    for f in reads(0, 0): f()
    pend = []
    for s in range(8):
        for ks in range(4):
            p = (4*s + ks) & 1; XF = 8*p; WF = 16 + 12*p; t = (s, ks); first = (s == 0 and ks == 0)
            nxt = (s, ks+1) if ks < 3 else ((s+1, 0) if s < 7 else None)
            if ks == 3 and s < 7:
                a.lg.drain(); a.vm.wait(('st', s+1)); a('s_barrier')
                if s + 3 < 8: pend = dma_ops(s + 3)
            def m(i):
                b = i & 1; seg = i >> 1
                a.lg.wait((t, 'x', b), (t, 'w', seg))
                if seg == 0: mfma(a, AQ+16*b, ar(WF), ar(XF+4*b), first)
                else: mfma(a, (AK if seg == 1 else AV)+16*b, ar(XF+4*b), ar(WF+4*seg), first)
            rd = reads(*nxt) if nxt else []
            nd = {3: 3, 0: 3, 1: 2, 2: 2}[ks]; dm = pend[:nd]; pend = pend[nd:]
            gaps = [rd[0:2], rd[2:4] + dm[0:1], rd[4:6], rd[6:8] + dm[1:2], dm[2:3], []]
            for i in range(6):
                m(i)
                for f in gaps[i]: f()
    a.stamp(3)
    a(f's_lshl_b32 s68, s{S_A}, 7'); a(f's_add_u32 s68, s68, {FL_LN}')
    a(f's_lshl_b32 s69, s{S_B}, 4'); a(f's_add_u32 s69, s69, {FL_CS}')
    a(f'v_lshl_add_u32 v3, v{LANE}, 4, s68'); a('v_mov_b32 v4, s69'); a(f'v_cmp_gt_u32 vcc, 8, v{LANE}'); a('s_mov_b32 s69, 0'); a('s_nop 0')
    a('v_cndmask_b32 v3, v4, v3, vcc')
    l = a.lab('poll'); d = a.lab('polld')
    a(f'{l}:'); a(f'buffer_load_dword v4, v3, {srd(WS)}, s{S_REP} offen sc1'); a.vm.drain()
    a(f'v_cmp_ne_u32 vcc, s{S_TAG}, v4'); a(f's_cbranch_vccz {d}')
    a('s_add_u32 s69, s69, 1'); a(f's_cmp_lt_u32 s69, {POLL_MAX}'); a(f's_cbranch_scc0 {d}'); a('s_sleep 1'); a(f's_branch {l}'); a(f'{d}:')
    a(f's_lshr_b32 s18, s{S_WAVE}, 1'); a(f's_and_b32 s19, s{S_WAVE}, 1')
    a(f's_lshl_b32 s68, s{S_A}, 1'); a('s_add_u32 s68, s68, s18'); a('s_lshl_b32 s68, s68, 9'); a(f's_add_u32 s68, s68, {ST_OFF}')
    a(f'v_and_b32 v3, 31, v{LANE}'); a('v_lshlrev_b32 v4, 4, v3')
    a(f'buffer_load_dwordx4 v[12:15], v4, {srd(WS)}, s68 offen sc1'); a.vm.issue('stat')
    a(f's_lshl_b32 s69, s{S_B}, 10'); a('s_lshl_b32 s70, s19, 7'); a('s_add_u32 s69, s69, s70'); a(f's_add_u32 s69, s69, {CS_OFF}')
    a('v_lshlrev_b32 v5, 2, v3'); a(f'v_lshrrev_b32 v6, 5, v{LANE}'); a('v_lshlrev_b32 v6, 4, v6')
    a(f'buffer_load_dword v52, v5, {srd(WS)}, s69 offen offset:256 sc1'); a.vm.issue('cs')
    a(f'buffer_load_dword v54, v5, {srd(WS)}, s69 offen offset:512 sc1'); a.vm.issue('cs')
    for q in range(4):
        a(f'buffer_load_dwordx4 {vr(36+4*q)}, v6, {srd(WS)}, s69 offen offset:{32*q} sc1'); a.vm.issue('csq')
    a(f's_lshl_b32 s70, s{S_WAVE}, 10'); a(f's_add_u32 s70, s70, {LDS_ST}')
    a('v_add_u32 v4, s70, v4'); a('v_add_u32 v6, s70, v6')
    a('v_lshrrev_b32 v7, 3, v3'); a('v_lshlrev_b32 v7, 6, v7'); a('v_and_b32 v8, 7, v3'); a('v_lshl_add_u32 v7, v8, 2, v7'); a('v_add_u32 v7, s70, v7')
    a(f's_mov_b32 s80, {LOG2E}'); a('s_mov_b32 s81, 0xb5c1a2a0'); a('s_mov_b32 s82, 0x358637bd')
    a.vm.wait('stat')
    a('ds_write_b128 v4, v[12:15]'); a('s_waitcnt lgkmcnt(0)')
    ST = 160
    for b in range(2):
        for q in range(4):
            a(f'ds_read_b128 {vr(ST+32*b+8*q)}, v6 offset:{256*b+64*q}'); a(f'ds_read_b128 {vr(ST+32*b+8*q+4)}, v6 offset:{256*b+64*q+32}')
        a('s_waitcnt lgkmcnt(0)')
    for b in range(2):
        a(f'ds_read_b32 v{56+2*b}, v7 offset:{256*b}'); a(f'ds_read_b32 v{57+2*b}, v7 offset:{256*b+32}')
    a.vm.wait('cs')
    PK, VF, ZA = 224, 20, 60
    pairs = []
    for b in range(2):
        for r in range(0, 16, 2):
            acc = AK + 16*b + r; rp = ST + 32*b + 8*(r >> 2) + (r & 3); mp = rp + 4
            def mkc(t, mp=mp): a(f'v_pk_fma_f32 {vr(t,2)}, {vr(mp,2)}, v[52:53], s[82:83] op_sel_hi:[1,0,0] neg_lo:[0,1,0] neg_hi:[0,1,0]')
            def fma(t, acc=acc, rp=rp): a(f'v_pk_fma_f32 {vr(t,2)}, {vr(acc,2)}, {vr(rp,2)}, {vr(t,2)}')
            pairs.append((acc, mkc, fma, PK + 8*b + (r >> 1)))
    phi_pairs(a, pairs, zacc=ZA)
    VF = AK
    for i0 in range(0, 16, 4):
        for j in range(4):
            b, r = (i0+j) >> 3, 2*((i0+j) & 7); mp = ST + 32*b + 8*(r >> 2) + (r & 3) + 4
            a(f'v_pk_mul_f32 {vr(10+2*j,2)}, {vr(mp,2)}, v[54:55] op_sel_hi:[1,0] neg_lo:[0,1] neg_hi:[0,1]')
        for j in range(4):
            b, r = (i0+j) >> 3, 2*((i0+j) & 7); rp = ST + 32*b + 8*(r >> 2) + (r & 3)
            a(f'v_pk_fma_f32 {vr(10+2*j,2)}, {vr(AV+16*b+r,2)}, {vr(rp,2)}, {vr(10+2*j,2)}')
        for j in range(4):
            a(f'v_cvt_pk_bf16_f32 v{VF+i0+j}, v{10+2*j}, v{11+2*j}')
    a(f'v_pk_add_f32 {vr(ZA,2)}, {vr(ZA,2)}, {vr(ZA+2,2)}')
    KD = AV
    for i in range(4): mfma(a, KD, vr(PK+4*i), vr(VF+4*i), i == 0)
    a(f'v_add_f32 v{ZA}, v{ZA}, v{ZA+1}'); a(f'v_mov_b32 v{ZA+1}, v{ZA}')
    a(f'v_and_b32 v4, 16, v{LANE}'); a('v_cmp_eq_u32 s[84:85], 0, v4')
    a(f'v_permlane32_swap_b32 v{ZA}, v{ZA+1}'); a(f'v_add_f32 v{ZA}, v{ZA}, v{ZA+1}')
    a(f's_lshl_b32 s68, s{S_B}, 1'); a('s_add_u32 s68, s68, s19'); a('s_lshl_b32 s20, s68, 12'); a(f's_add_u32 s20, s20, {Z_OFF}')
    a(f's_lshl_b32 s68, s{S_A}, 1'); a('s_add_u32 s68, s68, s18'); a('s_lshl_b32 s68, s68, 7'); a('s_add_u32 s68, s68, s20')
    a('s_mov_b32 exec_hi, 0'); a(f'buffer_store_dword v{ZA}, v5, {srd(WS)}, s68 offen sc1'); a('s_mov_b64 exec, -1')
    a(f's_lshl_b32 s70, s{S_WAVE}, 10'); a(f's_add_u32 s70, s70, {LDS_KVX}'); a(f'v_lshl_add_u32 v8, v{LANE}, 4, s70')
    a('v_xor_b32 v9, 2048, v8') if LDS_KVX % 4096 == 0 else (a(f's_xor_b32 s70, s{S_WAVE}, 2'), a('s_lshl_b32 s70, s70, 10'), a(f's_add_u32 s70, s70, {LDS_KVX}'), a(f'v_lshl_add_u32 v9, v{LANE}, 4, s70'))
    a('s_nop 4')
    for j in range(8): a(f'v_cndmask_b32 v{12+j}, v{KD+8+j}, v{KD+j}, s[84:85]')
    l1 = a.lab('mi1'); l2 = a.lab('mij')
    a('s_cmp_eq_u32 s18, 0'); a(f's_cbranch_scc0 {l1}')
    a('ds_write_b128 v8, v[16:19]'); a(f's_branch {l2}')
    a(f'{l1}:'); a('ds_write_b128 v8, v[12:15]'); a('s_nop 0'); a('v_mov_b64 v[12:13], v[16:17]'); a('v_mov_b64 v[14:15], v[18:19]')
    a(f'{l2}:')
    a('s_waitcnt lgkmcnt(0)'); a('s_barrier')
    a('ds_read_b128 v[16:19], v9')
    a(f's_lshl_b32 s21, s{S_B}, 16'); a('s_lshl_b32 s68, s19, 11'); a('s_add_u32 s21, s21, s68'); a('s_lshl_b32 s68, s18, 10'); a('s_add_u32 s21, s21, s68'); a(f's_add_u32 s21, s21, {KV_OFF}')
    a(f's_lshl_b32 s68, s{S_A}, 12'); a('s_add_u32 s68, s68, s21'); a(f'v_lshlrev_b32 v4, 4, v{LANE}')
    a('s_waitcnt lgkmcnt(0)')
    a('v_pk_add_f32 v[12:13], v[12:13], v[16:17]'); a('v_pk_add_f32 v[14:15], v[14:15], v[18:19]')
    a(f'buffer_store_dwordx4 v[12:15], v4, {srd(WS)}, s68 offen sc1')
    a.vm.drain(); a('s_barrier')
    a(f's_lshl_b32 s70, s{S_B}, 4'); a(f's_add_u32 s70, s70, s{S_A}')
    publish(a, FL_KV, 's70')
    a.stamp(4)
    PQ = 160
    pairs = []
    for b in range(2):
        for r in range(0, 16, 2):
            acc = AQ + 16*b + r
            def mkc(t, r=r, b=b): a(f'v_pk_fma_f32 {vr(t,2)}, {vr(36+r,2)}, {vr(56+2*b,2)}, s[82:83] op_sel:[0,1,0] op_sel_hi:[1,1,0] neg_lo:[0,1,0] neg_hi:[0,1,0]')
            def fma(t, acc=acc, b=b): a(f'v_pk_fma_f32 {vr(t,2)}, {vr(acc,2)}, {vr(56+2*b,2)}, {vr(t,2)} op_sel_hi:[1,0,1]')
            pairs.append((acc, mkc, fma, PQ + 8*b + (r >> 1)))
    phi_pairs(a, pairs)
    a(f's_lshl_b32 s70, s{S_B}, 4')
    poll(a, FL_KV, 's70', 16)
    a.stamp(5)
    a(f'v_lshlrev_b32 v4, 4, v{LANE}')
    for i in range(4):
        a(f'buffer_load_dwordx4 {vr(128+4*i)}, v4, {srd(WS)}, s20 offen offset:{1024*i} sc1'); a.vm.issue('z')
    for rb in range(16):
        a(f'buffer_load_dwordx4 {vr(64+4*rb)}, v4, {srd(WS)}, s21 offen sc1'); a.vm.issue(('kv', rb))
        if rb < 15: a('s_add_u32 s21, s21, 4096')
    a.vm.wait('z')
    for i in (0, 2): a(f'v_pk_add_f32 {vr(128+i,2)}, {vr(128+i,2)}, {vr(132+i,2)}'); a(f'v_pk_add_f32 {vr(136+i,2)}, {vr(136+i,2)}, {vr(140+i,2)}')
    for i in (0, 2): a(f'v_pk_add_f32 {vr(128+i,2)}, {vr(128+i,2)}, {vr(136+i,2)}')
    a('s_nop 1')
    for i in range(4): a(f'v_add_f32_dpp v{128+i}, v{128+i}, v{128+i} row_ror:8 row_mask:0xf bank_mask:0xf')
    for sw in ('16', '32'):
        for i in range(4): a(f'v_mov_b32 v{132+i}, v{128+i}')
        a('s_nop 0')
        for i in range(4): a(f'v_permlane{sw}_swap_b32 v{128+i}, v{132+i}')
        for i in range(4): a(f'v_add_f32 v{128+i}, v{128+i}, v{132+i}')
    a(f's_lshl_b32 s70, s{S_WAVE}, 10'); a(f's_add_u32 s70, s70, {LDS_ST}'); a('v_add_u32 v5, s70, v4')
    a('s_mov_b64 exec, 0xff'); a('ds_write_b128 v5, v[128:131]'); a('s_mov_b64 exec, -1')
    a('s_waitcnt lgkmcnt(0)')
    for hh in range(2):
        a(f'ds_read_b128 {vr(132+8*hh)}, v6 offset:{64*hh}'); a(f'ds_read_b128 {vr(136+8*hh)}, v6 offset:{64*hh+32}')
    for st in range(4):
        a.vm.wait(('kv', 4*st+3))
        for i in (0, 2):
            a(f'v_pk_add_f32 {vr(64+16*st+i,2)}, {vr(64+16*st+i,2)}, {vr(68+16*st+i,2)}'); a(f'v_pk_add_f32 {vr(72+16*st+i,2)}, {vr(72+16*st+i,2)}, {vr(76+16*st+i,2)}')
        for i in (0, 2): a(f'v_pk_add_f32 {vr(64+16*st+i,2)}, {vr(64+16*st+i,2)}, {vr(72+16*st+i,2)}')
    for i in (0, 2): a(f'v_pk_add_f32 {vr(64+i,2)}, {vr(64+i,2)}, {vr(80+i,2)}'); a(f'v_pk_add_f32 {vr(96+i,2)}, {vr(96+i,2)}, {vr(112+i,2)}')
    for i in (0, 2): a(f'v_pk_add_f32 {vr(64+i,2)}, {vr(64+i,2)}, {vr(96+i,2)}')
    a('v_cvt_pk_bf16_f32 v12, v64, v65'); a('v_cvt_pk_bf16_f32 v13, v66, v67')
    a('ds_write_b64 v8, v[12:13]')
    a('s_waitcnt lgkmcnt(0)')
    for hh in range(2):
        for j in range(4): a(f'v_cvt_pk_bf16_f32 v{20+4*hh+j}, v{132+8*hh+2*j}, v{133+8*hh+2*j}')
    a('s_barrier')
    a('ds_read_b64 v[14:15], v9'); a('s_waitcnt lgkmcnt(0)')
    l2 = a.lab('mik')
    a('s_cmp_eq_u32 s18, 0'); a(f's_cbranch_scc1 {l2}')
    a('v_swap_b32 v12, v14'); a('v_swap_b32 v13, v15')
    a(f'{l2}:')
    for j in range(4): a(f'v_cndmask_b32 v{28+j}, v{20+j}, v{12+j}, s[84:85]')
    for j in range(4): a(f'v_cndmask_b32 v{32+j}, v{12+j}, v{24+j}, s[84:85]')
    a('s_nop 1')
    for b in range(2):
        for hh in range(2): mfma(a, 64 + 32*b + 16*hh, vr(28+4*hh), vr(PQ + 8*b + 4*hh), True)
    a(f's_lshl_b32 s68, s{S_A}, 1'); a('s_add_u32 s68, s68, s18'); a('s_lshl_b32 s68, s68, 4'); a(f's_add_u32 s68, s68, s{S_B}')
    a('s_lshl_b32 s68, s68, 1'); a('s_add_u32 s68, s68, s19'); a('s_lshl_b32 s68, s68, 11'); a(f's_add_u32 s68, s68, {O_OFF}'); a('s_add_u32 s69, s68, 32768')
    a('s_nop 3')
    for b in range(2):
        for hh in range(2):
            d = 64 + 32*b + 16*hh; den = d + (8 if hh == 0 else 0); num = d + 8*hh; t = 12 + 2*(2*b+hh)
            if b == 1 and hh == 1: a('s_nop 2')
            a(f'v_add_f32 v{t}, s82, v{den}'); a(f'v_rcp_f32 v{t}, v{t}'); a('s_nop 0')
            for j in range(4): a(f'v_pk_mul_f32 {vr(num+2*j,2)}, {vr(num+2*j,2)}, {vr(t,2)} op_sel_hi:[1,0]')
            o = 128 + 4*(2*b+hh)
            for j in range(4): a(f'v_cvt_pk_bf16_f32 v{o+j}, v{num+2*j}, v{num+2*j+1}')
            if a.dbg == 'pq': o = PQ + 8*b + 4*hh
            a(f'buffer_store_dwordx4 {vr(o)}, v4, {srd(WS)}, s{68+b} offen offset:{1024*hh} sc1')
    a.vm.drain(); a('s_barrier')
    a(f's_lshl_b32 s70, s{S_A}, 3'); a(f's_add_u32 s70, s70, s{S_B}')
    publish(a, FL_O, 's70')
    a.stamp(6)
    a('s_branch L_p2')

RING = 36864
def g2(a):
    VW, VH, VT = 240, 243, 244
    SW, SH = 13, 14
    ACC = 64; HB = 32; HD = 11; WD = 12; BI = 160
    a('L_g2:')
    a.vm.q = []; a.lg.q = []
    a(f's_sub_u32 s70, s{S_IDX}, 16')
    a(f's_and_b32 s68, s{S_XCD}, 1'); a('s_lshl_b32 s68, s68, 2'); a('s_and_b32 s69, s70, 3'); a(f's_add_u32 s{S_A}, s68, s69')
    a(f's_lshr_b32 s68, s{S_XCD}, 1'); a('s_lshl_b32 s68, s68, 2'); a('s_lshr_b32 s69, s70, 2'); a(f's_add_u32 s{S_B}, s68, s69')
    a(f's_lshl_b32 s12, s{S_XCD}, 4'); a('s_add_u32 s12, s12, s70')
    a(f's_cmp_eq_u32 s{S_B}, 15'); a('s_cbranch_scc1 L_spare')
    a(f's_add_u32 s{S_ROT}, s{S_A}, s{S_B}'); a(f's_and_b32 s{S_ROT}, s{S_ROT}, 3')
    a(f's_mul_i32 s68, s{S_B}, 192')
    for j in range(3):
        a(f'v_add_u32 v3, {64*j}, v{LANE}'); a('v_mul_u32_u24 v4, 171, v3'); a('v_lshrrev_b32 v4, 11, v4')
        a('v_mul_u32_u24 v5, 12, v4'); a('v_sub_u32 v5, v3, v5'); a('v_mul_u32_u24 v4, 2752, v4'); a('v_lshl_add_u32 v4, v5, 4, v4')
        if j: a(f'v_subrev_u32 v4, {1024*j}, v4')
        a(f'v_add_u32 v{VW+j}, s68, v4')
    a(f's_lshl_b32 s68, s{S_WAVE}, 2'); a(f's_add_u32 s68, s68, s{S_ROT}')
    a(f's_mul_i32 s{SW}, s68, {128*2752}'); a(f's_lshl_b32 s{SH}, s68, 17')
    a(f's_mul_i32 s15, s{S_WAVE}, {RING}')
    def adv(sreg, stride, n):
        if n >= 32: return
        a(f's_add_u32 s{sreg}, s{sreg}, {stride}')
        if n % 8 == 0:
            a(f's_cmp_eq_u32 s{S_ROT}, {(32-n)//8}'); a(f's_cselect_b32 s68, {32*stride}, 0'); a(f's_sub_u32 s{sreg}, s{sreg}, s68')
    def dma(n):
        ops = []
        for j in range(3):
            def f(j=j):
                if j == 0: a(f's_add_u32 m0, s15, {(n % WD)*3072}'); a('s_nop 0')
                a(f'buffer_load_dwordx4 v{VW+j}, {srd(W1)}, s{SW} offen offset:{1024*j} {a.w1flags}lds'); a.vm.issue(('w', n))
                if j == 2: adv(SW, 16*2752, n+1)
            ops.append(f)
        return ops
    def hld(n):
        ops = []
        for b in range(2):
            def f(b=b):
                a(f'buffer_load_dwordx4 {ar(HB + 8*(n % HD) + 4*b)}, v{VH}, {srd(WS)}, s{SH} offen offset:{512*b} sc1'); a.vm.issue(('h', n))
                if b == 1: adv(SH, 16384, n+1)
            ops.append(f)
        return ops
    for n in range(WD):
        for f in dma(n): f()
    a(f'v_lshrrev_b32 v4, 5, v{LANE}'); a(f's_and_b32 s19, s{S_WAVE}, 1'); a(f's_lshr_b32 s18, s{S_WAVE}, 1')
    a(f's_mul_i32 s68, s{S_B}, 192'); a('s_mul_i32 s69, s19, 96'); a('s_add_u32 s68, s68, s69'); a('v_lshlrev_b32 v3, 3, v4')
    for m in range(3):
        for q in range(2):
            a(f'buffer_load_dwordx2 {vr(10+4*m+2*q,2)}, v3, {srd(B1)}, s68 offen offset:{32*m+16*q}'); a.vm.issue('b1')
    a(f'v_and_b32 v3, 31, v{LANE}'); a(f's_lshl_b32 s68, s{S_A}, 10'); a('v_lshl_add_u32 v3, v3, 4, s68'); a(f'v_lshl_add_u32 v{VH}, v4, 13, v3')
    a(f'v_bfe_u32 v3, v{LANE}, 2, 2'); a('v_lshl_add_u32 v3, v4, 3, v3'); a('v_mul_u32_u24 v3, 192, v3')
    a(f'v_bfe_u32 v5, v{LANE}, 4, 1'); a('v_lshl_add_u32 v3, v5, 5, v3'); a(f'v_and_b32 v5, 3, v{LANE}'); a('v_lshl_add_u32 v3, v5, 3, v3')
    a(f'v_add_u32 v{VT}, s15, v3')
    make_tag(a)
    publish(a, FL_RD, 's12', nrep=1)
    a.stamp(1)
    a(f's_lshl_b32 s70, s{S_WAVE}, 5')
    poll(a, FL_LN, 's70', 32)
    a.stamp(2)
    for n in range(HD-1):
        for f in hld(n): f()
    for i in range(12):
        a(f'v_lshlrev_b32 v{BI+2*i}, 16, v{10+i}'); a(f'v_and_b32 v{BI+2*i+1}, 0xffff0000, v{10+i}')
    def trs(n):
        ops = []
        for t in range(3):
            for jj in range(2):
                def f(t=t, jj=jj):
                    a(f'ds_read_b64_tr_b16 {ar(12*(n&1) + 4*t + 2*jj, 2)}, v{VT} offset:{(n % WD)*3072 + jj*768 + t*64}'); a.lg.issue((n, t))
                ops.append(f)
        return ops
    for f in trs(0): f()
    for n in range(32):
        a.vm.wait(('h', n), ('w', n+1))
        rd = trs(n+1) if n+1 < 32 else []
        hl = hld(n+HD-1) if n+HD-1 < 32 else []
        dm = dma(n+WD) if n+WD < 32 else []
        gaps = [rd[0:2] + hl[0:1], rd[2:4] + hl[1:2], rd[4:6], [], dm[0:2], dm[2:3]]
        for i in range(6):
            t, b = i >> 1, i & 1
            a.lg.wait((n, t))
            mfma(a, ACC + 16*(3*b+t), ar(12*(n&1) + 4*t), ar(HB + 8*(n % HD) + 4*b), n == 0)
            for f in gaps[i]: f()
    a.stamp(3)
    R = 10
    a(f'v_lshlrev_b32 v4, 4, v{LANE}'); a('v_add_u32 v5, s15, v4')
    a(f's_mov_b32 s80, 0xbdd2d3e8'); a('s_mov_b32 s81, 0xc0135761')
    a('s_nop 7')
    lj = a.lab('g2j'); lw = [a.lab('g2w') for _ in range(4)]
    for w in range(1, 4): a(f's_cmp_eq_u32 s{S_WAVE}, {w}'); a(f's_cbranch_scc1 {lw[w]}')
    for w in range(4):
        a(f'{lw[w]}:')
        for u in range(12):
            o = u // 3
            if o == w: continue
            slot = 3*(o - (1 if o > w else 0)) + u % 3
            for hf in range(2): a(f'ds_write_b128 v5, {vr(ACC + 8*u + 4*hf)} offset:{slot*2048 + hf*1024}')
        a('s_waitcnt lgkmcnt(0)'); a('s_barrier')
        srcs = [x for x in range(4) if x != w]
        for k, sw in enumerate(srcs):
            a(f'v_add_u32 v{6+k}, {sw*RING}, v4')
        for m in range(3):
            for k, sw in enumerate(srcs):
                slot = 3*(w - (1 if w > sw else 0)) + m
                for hf in range(2): a(f'ds_read_b128 {vr(184 + 8*k + 4*hf)}, v{6+k} offset:{slot*2048 + hf*1024}')
            own = ACC + 8*(3*w + m)
            for j in range(4): a(f'v_pk_add_f32 {vr(R+8*m+2*j,2)}, {vr(own+2*j,2)}, {vr(BI+8*m+2*j,2)}')
            for k in range(3):
                a(f's_waitcnt lgkmcnt({4-2*k})')
                for j in range(4): a(f'v_pk_add_f32 {vr(R+8*m+2*j,2)}, {vr(R+8*m+2*j,2)}, {vr(184+8*k+2*j,2)}')
        if w < 3: a(f's_branch {lj}')
    a(f'{lj}:')
    a(f's_lshl_b32 s68, s{S_A}, 1'); a('s_add_u32 s68, s68, s18'); a('s_mul_i32 s68, s68, 86')
    a(f's_mul_i32 s69, s{S_B}, 6'); a('s_mul_i32 s70, s19, 3'); a('s_add_u32 s69, s69, s70')
    a('s_add_u32 s68, s68, s69'); a('s_lshl_b32 s68, s68, 10'); a(f's_add_u32 s68, s68, {G_OFF}')
    T = 40
    for m in range(3):
        U = R + 8*m
        for j in range(4): a(f'v_pk_mul_f32 {vr(T+2*j,2)}, {vr(U+2*j,2)}, {vr(U+2*j,2)}')
        for j in range(4): a(f'v_pk_fma_f32 {vr(T+2*j,2)}, {vr(T+2*j,2)}, s[80:81], s[80:81] op_sel:[0,0,1] op_sel_hi:[1,0,1]')
        for j in range(4): a(f'v_pk_mul_f32 {vr(T+2*j,2)}, {vr(T+2*j,2)}, {vr(U+2*j,2)}')
        for j in range(8): a(f'v_exp_f32 v{T+j}, v{T+j}')
        for j in range(4): a(f'v_pk_add_f32 {vr(T+2*j,2)}, {vr(T+2*j,2)}, 1.0 op_sel_hi:[1,0]')
        for j in range(8): a(f'v_rcp_f32 v{T+j}, v{T+j}')
        for j in range(4): a(f'v_pk_mul_f32 {vr(T+2*j,2)}, {vr(T+2*j,2)}, {vr(U+2*j,2)}')
        for j in range(4): a(f'v_cvt_pk_bf16_f32 v{48+4*m+j}, v{T+2*j}, v{T+2*j+1}')
        l = a.lab('gsk')
        a(f's_cmp_lt_u32 s69, {86-m}'); a(f's_cbranch_scc0 {l}')
        a(f'buffer_store_dwordx4 {vr(48+4*m)}, v4, {srd(WS)}, s68 offen offset:{1024*m} sc1')
        a(f'{l}:')
    a.vm.drain(); a('s_barrier')
    a(f's_lshl_b32 s70, s{S_A}, 4'); a(f's_add_u32 s70, s70, s{S_B}')
    publish(a, FL_G, 's70')
    a.stamp(6)
    a('s_branch L_p2')

def spare(a):
    a('L_spare:')
    a.vm.q = []; a.lg.q = []
    a(f'v_lshrrev_b32 v3, 3, v{LANE}'); a(f'v_and_b32 v4, 7, v{LANE}'); a('v_mul_u32_u24 v3, 3072, v3'); a('v_lshl_add_u32 v3, v4, 4, v3')
    a(f's_mul_i32 s68, s{S_WAVE}, {128*3072}'); a(f's_lshl_b32 s69, s{S_A}, 7'); a('s_add_u32 s68, s68, s69')
    for i in range(16):
        for seg in range(3):
            a(f'buffer_load_dwordx4 {vr(48 + 12*i + 4*seg)}, v3, {srd(WQ)}, s68 offen offset:{1024*seg}'); a.vm.issue((i, seg))
        a(f's_add_u32 s68, s68, {8*3072}')
    make_tag(a)
    publish(a, FL_RD, 's12', nrep=1)
    for i in range(24): a(f'v_mov_b32 v{10+i}, 0')
    for i in range(16):
        for seg in range(3):
            a.vm.wait((i, seg)); s = 48 + 12*i + 4*seg
            for j in range(4): a(f'v_lshlrev_b32 v{34+2*j}, 16, v{s+j}'); a(f'v_and_b32 v{35+2*j}, 0xffff0000, v{s+j}')
            for j in range(4): a(f'v_pk_add_f32 {vr(10+8*seg+2*j,2)}, {vr(10+8*seg+2*j,2)}, {vr(34+2*j,2)}')
    a(f's_mul_i32 s68, s{S_WAVE}, 6144'); a(f'v_lshl_add_u32 v3, v{LANE}, 5, s68')
    for seg in range(3):
        for hf in range(2): a(f'ds_write_b128 v3, {vr(10+8*seg+4*hf)} offset:{2048*seg+16*hf}')
    a('s_waitcnt lgkmcnt(0)'); a('s_barrier')
    l = a.lab('cs')
    a(f's_cmp_eq_u32 s{S_WAVE}, 3'); a(f's_cbranch_scc1 {l}')
    a(f's_lshl_b32 s68, s{S_WAVE}, 11'); a(f'v_lshl_add_u32 v3, v{LANE}, 2, s68')
    for w in range(4):
        for rg in range(8): a(f'ds_read_b32 v{10+8*w+rg}, v3 offset:{6144*w+256*rg}')
        a('s_waitcnt lgkmcnt(0)')
    for st in (16, 8, 4, 2):
        for j in range(0, st, 2): a(f'v_pk_add_f32 {vr(10+j,2)}, {vr(10+j,2)}, {vr(10+st+j,2)}')
    a('v_add_f32 v10, v10, v11')
    a(f's_lshl_b32 s68, s{S_A}, 10'); a(f's_add_u32 s68, s68, {CS_OFF}'); a('v_lshlrev_b32 v3, 2, v0')
    a(f'buffer_store_dword v10, v3, {srd(WS)}, s68 offen sc1')
    a(f'{l}:')
    a.vm.drain(); a('s_barrier')
    publish(a, FL_CS, f's{S_A}')
    a.stamp(2)
    a(f's_or_b32 s70, s{S_A}, s{S_WAVE}'); a('s_cmp_eq_u32 s70, 0'); a('s_cbranch_scc0 L_p2')
    for base, rep in ((FL_LN, True), (FL_RD, False)):
        for f in (0, 64):
            a(f's_mov_b32 s70, {f}'); poll(a, base, 's70', 64, rep=rep)
    a(f's_mov_b32 s68, {EP_OFF}'); a(f'v_mov_b32 v4, s{S_TAG}'); a('s_mov_b64 exec, 1')
    a(f'buffer_store_dword v4, off, {srd(WS)}, s68 sc1'); a('s_mov_b64 exec, -1')

def p2(a):
    VD2, VDO, VT, VG, VX = 240, 242, 244, 246, 247
    ACC = 64; SB = 128; SD = 14; XB = 40; WOF = 176
    a('L_p2:')
    a.vm.q = []; a.lg.q = []
    a(f's_mul_i32 s15, s{S_WAVE}, {RING}')
    a(f'v_lshrrev_b32 v3, 3, v{LANE}'); a(f'v_and_b32 v4, 7, v{LANE}'); a(f'v_bfe_u32 v5, v{LANE}, 4, 1'); a('v_lshlrev_b32 v5, 2, v5'); a('v_xor_b32 v4, v4, v5')
    a('v_lshlrev_b32 v4, 4, v4')
    a(f's_lshl_b32 s68, s{S_ST}, 7'); a('v_lshl_add_u32 v5, v3, 12, v4'); a(f'v_add_u32 v{VD2}, s68, v5'); a(f'v_add_u32 v{VD2+1}, {32768-1024}, v{VD2}')
    a(f's_lshl_b32 s68, s{S_NT}, 7'); a('v_lshl_add_u32 v5, v3, 10, v4'); a(f'v_add_u32 v{VDO}, s68, v5'); a(f'v_add_u32 v{VDO+1}, {8192-1024}, v{VDO}')
    a(f's_mul_i32 s16, s{S_WAVE}, 22'); a(f's_cmp_eq_u32 s{S_WAVE}, 3'); a('s_cselect_b32 s16, 65, s16')
    a('s_lshl_b32 s13, s16, 16'); a(f's_lshl_b32 s14, s{S_WAVE}, 17')
    a('s_barrier')
    units = [('o', i) for i in range(8)] + [('g', i) for i in range(22)]
    def dma(k):
        kind, i = units[k]; slot = k % 18
        a(f's_add_u32 m0, s15, {slot*2048}')
        v, s, so, st = (VDO, WO, 14, 16384) if kind == 'o' else (VD2, W2, 13, 65536)
        a('s_nop 0')
        fl = '' if kind == 'o' else a.w2flags
        a(f'buffer_load_dwordx4 v{v}, {srd(s)}, s{so} offen {fl}lds'); a.vm.issue(('u', k))
        a(f'buffer_load_dwordx4 v{v+1}, {srd(s)}, s{so} offen offset:1024 {fl}lds'); a.vm.issue(('u', k))
        a(f's_add_u32 s{so}, s{so}, {st}')
    def tr(k):
        kind, i = units[k]; slot = k % 18; base = (WOF if kind == 'o' else 0) + 8*i
        for cb in range(2):
            for jj in range(2):
                a(f'ds_read_b64_tr_b16 {ar(base + 4*cb + 2*jj, 2)}, v{VT+cb} offset:{slot*2048 + jj*1024}'); a.lg.issue(('u', k))
    for k in range(18): dma(k)
    a(f's_and_b32 s19, s{S_WAVE}, 1'); a(f's_lshr_b32 s18, s{S_WAVE}, 1')
    a(f'v_and_b32 v3, 31, v{LANE}'); a(f'v_lshrrev_b32 v4, 5, v{LANE}')
    a(f's_lshl_b32 s68, s{S_ST}, 1'); a('s_add_u32 s68, s68, s19'); a('s_lshl_b32 s68, s68, 5'); a('v_add_u32 v3, s68, v3')
    a('v_lshlrev_b32 v5, 1, v3'); a(f'buffer_load_ushort v9, v5, {srd(B2)}, 0 offen'); a.vm.issue('x')
    a(f's_lshl_b32 s68, s{S_NT}, 1'); a('s_add_u32 s68, s68, s18'); a('s_lshl_b32 s68, s68, 6'); a('v_lshl_add_u32 v3, v3, 10, s68')
    a('v_lshl_add_u32 v5, v4, 3, v3'); a(f'v_lshl_add_u32 v{VX}, v4, 4, v3')
    for q in range(4): a(f'buffer_load_dwordx2 {vr(10+2*q,2)}, v5, {srd(X)}, 0 offen offset:{16*q}'); a.vm.issue('x')
    a(f'v_bfe_u32 v3, v{LANE}, 2, 2'); a('v_lshl_add_u32 v3, v4, 2, v3'); a('v_lshlrev_b32 v3, 7, v3')
    a(f'v_bfe_u32 v5, v{LANE}, 4, 1'); a(f'v_bfe_u32 v6, v{LANE}, 1, 1'); a('v_lshl_add_u32 v5, v5, 1, v6')
    a(f'v_bfe_u32 v6, v{LANE}, 3, 1'); a('v_lshl_add_u32 v5, v6, 2, v5'); a('v_lshl_add_u32 v3, v5, 4, v3')
    a(f'v_and_b32 v5, 1, v{LANE}'); a('v_lshl_add_u32 v3, v5, 3, v3'); a('v_xor_b32 v5, 64, v3')
    a(f'v_add_u32 v{VT}, s15, v3'); a(f'v_add_u32 v{VT+1}, s15, v5'); a(f'v_lshlrev_b32 v{VG}, 4, v{LANE}')
    for k in range(30):
        a.vm.wait(('u', k)); tr(k)
        if k >= 2: a.lg.wait(('u', k-2))
        if k >= 2 and k - 2 + 18 < 30: dma(k - 2 + 18)
    a.vm.wait('x')
    a('v_lshlrev_b32 v8, 16, v9')
    for j in range(8): a(f'v_lshlrev_b32 v{XB+2*j}, 16, v{10+j}'); a(f'v_and_b32 v{XB+2*j+1}, 0xffff0000, v{10+j}')
    for j in range(8): a(f'v_pk_add_f32 {vr(XB+2*j,2)}, {vr(XB+2*j,2)}, v[8:9] op_sel_hi:[1,0]')
    a.lg.drain()
    a.stamp(7)
    a(f's_lshr_b32 s70, s{S_ST}, 1'); a('s_lshl_b32 s70, s70, 3'); a(f's_lshl_b32 s71, s{S_WAVE}, 1'); a('s_add_u32 s70, s70, s71')
    poll(a, FL_O, 's70', 2)
    a.stamp(8)
    a(f's_lshl_b32 s68, s{S_ST}, 16'); a(f's_lshl_b32 s69, s{S_WAVE}, 13'); a('s_add_u32 s68, s68, s69'); a(f's_add_u32 s20, s68, {O_OFF}'); a('s_add_u32 s21, s20, 32768')
    for i in range(8):
        for b in range(2):
            a(f'buffer_load_dwordx4 {vr(SB + 8*i + 4*b)}, v{VG}, {srd(WS)}, s{20+b} offen offset:{1024*(i&3)} sc1'); a.vm.issue(('o', i))
        if i == 3: a('s_add_u32 s20, s20, 4096'); a('s_add_u32 s21, s21, 4096')
    for i in range(8):
        a.vm.wait(('o', i))
        for nb in range(2):
            for sb in range(2): mfma(a, ACC + 16*(2*nb+sb), ar(WOF + 8*i + 4*nb), vr(SB + 8*i + 4*sb), i == 0)
    a(f's_lshl_b32 s70, s{S_NT}, 4')
    poll(a, FL_G, 's70', 15)
    a.stamp(9)
    a(f's_mul_i32 s68, s{S_NT}, 172'); a('s_add_u32 s68, s68, s16'); a('s_lshl_b32 s68, s68, 10'); a(f's_add_u32 s20, s68, {G_OFF}'); a(f's_add_u32 s21, s20, {86*1024}')
    def gld(i):
        for b in range(2):
            a(f'buffer_load_dwordx4 {vr(SB + 8*(i % SD) + 4*b)}, v{VG}, {srd(WS)}, s{20+b} offen offset:{1024*(i&3)} sc1'); a.vm.issue(('g', i))
        if i & 3 == 3: a('s_add_u32 s20, s20, 4096'); a('s_add_u32 s21, s21, 4096')
    for i in range(SD-1): gld(i)
    for i in range(22):
        a.vm.wait(('g', i))
        if i == 21: a(f's_cmp_ge_u32 s{S_WAVE}, 2'); a('s_cbranch_scc1 L_p2skip')
        for nb in range(2):
            for sb in range(2):
                mfma(a, ACC + 16*(2*nb+sb), vr(SB + 8*(i % SD) + 4*nb), ar(8*i + 4*sb))
                if nb == 0 and sb == 0 and i + SD - 1 < 22: gld(i + SD - 1)
    a('L_p2skip:')
    a.stamp(10)
    a(f'v_add_u32 v5, s15, v{VG}')
    a('s_nop 9')
    R = 10
    lj = a.lab('p2j'); lw = [a.lab('p2w') for _ in range(4)]
    for w in range(1, 4): a(f's_cmp_eq_u32 s{S_WAVE}, {w}'); a(f's_cbranch_scc1 {lw[w]}')
    for w in range(4):
        a(f'{lw[w]}:')
        for o in range(4):
            if o == w: continue
            slot = o - (1 if o > w else 0)
            for q in range(4): a(f'ds_write_b128 v5, {vr(ACC + 16*o + 4*q)} offset:{slot*4096 + q*1024}')
        srcs = [x for x in range(4) if x != w]
        for k, sw in enumerate(srcs): a(f'v_add_u32 v{6+k}, {sw*RING + (w - (1 if w > sw else 0))*4096}, v{VG}')
        for j in range(8): a(f'v_pk_add_f32 {vr(R+2*j,2)}, {vr(ACC+16*w+2*j,2)}, {vr(XB+2*j,2)}')
        if w < 3: a(f's_branch {lj}')
    a(f'{lj}:')
    a('s_waitcnt lgkmcnt(0)'); a('s_barrier')
    for k in range(3):
        for q in range(4): a(f'ds_read_b128 {vr(SB + 16*k + 4*q)}, v{6+k} offset:{q*1024}')
    for k in range(3):
        a(f's_waitcnt lgkmcnt({8-4*k})')
        for j in range(8): a(f'v_pk_add_f32 {vr(R+2*j,2)}, {vr(R+2*j,2)}, {vr(SB+16*k+2*j,2)}')
    for j in range(8): a(f'v_cvt_pk_bf16_f32 v{28+j}, v{R+2*j}, v{R+2*j+1}')
    a('s_nop 1')
    for g in range(2):
        a(f'v_permlane32_swap_b32 v{28+4*g}, v{30+4*g}'); a(f'v_permlane32_swap_b32 v{29+4*g}, v{31+4*g}')
    for g in range(2): a(f'buffer_store_dwordx4 {vr(28+4*g)}, v{VX}, {srd(OUT)}, 0 offen offset:{32*g}')
    a.stamp(11)
    a.stamp_flush()

HEADER = open('cdna_kernels/' + NAME + '.s.ref').read().split('; Override launch')[0]
def build(ts=False, w1flags='', w2flags='', dbg=None):
    a = K(ts=ts); a.dbg = dbg; a.w1flags = w1flags; a.w2flags = w2flags
    for l in HEADER.strip().split('\n'): a(l)
    a.header([f'; @launch grid=(256,1,1) block=(256,1,1) lds={LDS_TOTAL}'])
    a('.set CODE_SHARE, 12')
    a.begin(NAME + '_kernel')
    prologue(a); g1(a); g2(a); spare(a); p2(a)
    a('L_exit:'); a('s_endpgm'); a('L_end:')
    a.desc(NAME + '_kernel', vgpr=256, agpr=256, sgpr=102)
    return a.text()

if __name__ == '__main__':
    import hazard, math, struct
    f2h = lambda x: hex(struct.unpack('<I', struct.pack('<f', x))[0])
    k0 = -2*math.sqrt(2/math.pi)*math.log2(math.e)
    print('consts', f2h(k0), f2h(k0*0.044715), f2h(1e-6), f2h(-1e-6*math.log2(math.e)), f2h(1e-5), f2h(math.log2(math.e)))
    t = build(ts='ts' in sys.argv)
    hazard.check(t)
    out = 'k_ts.s' if 'ts' in sys.argv else 'cdna_kernels/' + NAME + '.s'
    open(out, 'w').write(t); print('wrote', out, len(t))
```
